```python
import torch

def _softmax(x, axis=-1):
    return torch.softmax(x, dim=axis)
def _gelu(x):
    return torch.nn.functional.gelu(x, approximate="tanh")
def _silu(x):
    return torch.nn.functional.silu(x)
def _sigmoid(x):
    return torch.sigmoid(x)
def _layernorm(x, axis=-1, eps=1e-5):
    m = x.mean(dim=axis, keepdim=True)
    v = x.var(dim=axis, keepdim=True, unbiased=False)
    return (x - m) / torch.sqrt(v + eps)
def _scatter_add(tgt, idx, src, axis=0):
    return tgt.clone().index_add_(axis, idx, src)
def _segment_sum(src, seg, n):
    out = torch.zeros((n,) + src.shape[1:], dtype=src.dtype)
    return out.index_add_(0, seg, src)
def _pad(x, pw):
    flat = tuple(v for pair in reversed(pw) for v in pair)
    return torch.nn.functional.pad(x, flat)

kernel_name = 'standalone__low_rank_proj_linformer__decode'

def setup_inputs():

    _w = (lambda a: (lambda t: t.to(torch.bfloat16) if t.is_floating_point() else t)(torch.as_tensor(a)))
    B, H, Sq, Skv, Dh, R = 1, 32, 1, 4096, 192, 64
    return {
        "q": _w((lambda *s: torch.randn(*s, dtype=torch.bfloat16) * 0.8)(B, H, Sq, Dh)),
        "k": _w((lambda *s: torch.randn(*s, dtype=torch.bfloat16) * 0.8)(B, H, Skv, Dh)),
        "v": _w((lambda *s: torch.randn(*s, dtype=torch.bfloat16) * 0.05)(B, H, Skv, Dh)),
        "e_proj": _w((lambda *s: torch.randn(*s, dtype=torch.bfloat16) * 0.8)(R, Skv) * (Skv ** -0.5)),
        "f_proj": _w((lambda *s: torch.randn(*s, dtype=torch.bfloat16) * 0.05)(R, Skv) * (Skv ** -0.5)),
    }

def reference(q, k, v, e_proj, f_proj):
    B, H, Sq, Dh = q.shape
    kp = torch.einsum("rn,bhnd->bhrd", e_proj, k)
    vp = torch.einsum("rn,bhnd->bhrd", f_proj, v)
    scores = torch.einsum("bhqd,bhrd->bhqr", q, kp) * (Dh ** -0.5)
    p = _softmax(scores, axis=-1)
    o = torch.einsum("bhqr,bhrd->bhqd", p, vp)
    return o
```

```python
import sys

KNAME = "standalone__low_rank_proj_linformer__decode_kernel"

class Asm:
    def __init__(self):
        self.L = []
        self.vm = []
        self.done = set()
    def __call__(self, s):
        self.L.append("  " + s)
    def label(self, s):
        self.L.append(s + ":")
    def comment(self, s):
        self.L.append("  ; " + s)
    def issue(self, name, s):
        self.L.append("  " + s)
        self.vm.append(name)
    def wait(self, name):
        if name in self.done:
            return
        i = self.vm.index(name)
        n = len(self.vm) - 1 - i
        assert n <= 63
        self.L.append(f"  s_waitcnt vmcnt({n})")
        self.done.update(self.vm[:i+1])
        self.vm = self.vm[i+1:]
    def waitall(self):
        self.L.append("  s_waitcnt vmcnt(0)")
        self.vm = []
    def nop(self, n):
        while n > 0:
            k = min(n, 16)
            self.L.append(f"  s_nop {k-1}")
            n -= k

def gen(W=4, PW=23, polK='nt', polV='nt', polE='', polF='', hilo_s=1, hilo_p=1, hilo_w=0, stamps=0, prefetch_code=0,
        epos=None, sleep=1, skipE=0, skipF=0, hmap=0, nopoll=0, sleep0=8, nobar1=0):
    a = Asm()
    NWG = 256
    LDS_S   = 0
    LDS_SC  = 2048
    LDS_P   = 6144
    LDS_W   = 6400
    LDS_O   = 10496
    LDS_END = LDS_O + 16 * 768
    hdr = []
    hdr.append(f"; @launch grid=({NWG},1,1) block=(576,1,1) lds={LDS_END}")
    hdr.append('.amdgcn_target "amdgcn-amd-amdhsa--gfx950"')
    hdr.append('.text')
    hdr.append(f'.globl {KNAME}')
    hdr.append('.p2align 8')
    hdr.append(f'.type {KNAME},@function')
    hdr.append(f'{KNAME}:')

    a(f"s_cmp_ge_u32 s2, {NWG}")
    a("s_cbranch_scc1 L_end")
    if stamps: a("s_memrealtime s[60:61]")
    a("s_load_dwordx16 s[4:19], s[0:1], 0")
    a("v_lshrrev_b32 v1, 6, v0")
    a("v_and_b32 v0, 63, v0")
    if hmap == 0:
        a("s_lshr_b32 s36, s2, 3")
        a("v_readfirstlane_b32 s3, v1")
        a("s_and_b32 s37, s2, 7")
    else:
        a("s_and_b32 s36, s2, 31")
        a("v_readfirstlane_b32 s3, v1")
        a("s_lshr_b32 s37, s2, 5")
    a("s_lshl_b32 s53, s36, 3")
    a("s_add_u32 s53, s53, s37")
    a("s_cmp_eq_u32 s3, 8")
    a("s_cbranch_scc1 L_ctrl")

    VQ = 4; VE = 16; VV = 48
    KW0 = 144 - 4 * W
    assert W <= 8
    VT = 144
    VMASK = 152
    VACC = 156
    a("v_lshrrev_b32 v2, 3, v0")
    a("v_and_b32 v3, 7, v0")
    a("v_lshlrev_b32 v144, 4, v3")
    a("v_mul_u32_u24 v1, 384, v2")
    a("v_add_u32 v1, v1, v144")
    a("s_mul_i32 s38, s53, 196608")
    a("s_mul_i32 s39, s3, 24576")
    a("s_add_u32 s38, s38, s39")
    a("s_mul_i32 s39, s36, 384")
    a("s_lshl_b32 s40, s37, 10")
    a("s_lshl_b32 s41, s3, 7")
    a("s_add_u32 s40, s40, s41")
    a("s_waitcnt lgkmcnt(0)")
    a("s_add_u32 s4, s4, s39")
    a("s_addc_u32 s5, s5, 0")
    for b in range(3):
        a.issue(f"q{b}", f"global_load_dwordx4 v[{VQ+4*b}:{VQ+4*b+3}], v144, s[4:5] offset:{128*b}")
    a("s_add_u32 s20, s6, s38"); a("s_addc_u32 s21, s7, 0"); a("s_mov_b32 s22, 24576"); a("s_mov_b32 s23, 0x20000")
    a("s_movk_i32 s41, 6144"); a("s_movk_i32 s42, 12288"); a("s_movk_i32 s43, 18432")
    soffKV = ["0", "s41", "s42", "s43"]
    def kv_addr(i):
        g, b = divmod(i, 3)
        return soffKV[g >> 1], (g & 1) * 3072 + b * 128
    def issueK(i):
        so, im = kv_addr(i)
        r = KW0 + 4 * (i % W)
        a.issue(f"K{i}", f"buffer_load_dwordx4 v[{r}:{r+3}], v1, s[20:23], {so} offen offset:{im} {polK}".rstrip())
    def issueV(i):
        so, im = kv_addr(i)
        r = VV + 4 * i
        a.issue(f"V{i}", f"buffer_load_dwordx4 v[{r}:{r+3}], v1, s[24:27], {so} offen offset:{im} {polV}".rstrip())
    for i in range(W):
        issueK(i)
    a("s_add_u32 s24, s8, s38"); a("s_addc_u32 s25, s9, 0"); a("s_mov_b32 s26, 24576"); a("s_mov_b32 s27, 0x20000")
    a("s_add_u32 s28, s10, s40"); a("s_addc_u32 s29, s11, 0"); a("s_sub_u32 s30, 524288, s40"); a("s_mov_b32 s31, 0x20000")
    a("s_add_u32 s32, s12, s40"); a("s_addc_u32 s33, s13, 0"); a("s_sub_u32 s34, 524288, s40"); a("s_mov_b32 s35, 0x20000")
    a("s_mov_b32 s44, 131072"); a("s_mov_b32 s45, 262144"); a("s_mov_b32 s46, 393216")
    a("s_mov_b32 s47, 65536"); a("s_mov_b32 s48, 196608"); a("s_mov_b32 s49, 327680"); a("s_mov_b32 s50, 458752")
    soffE = ["0", "s44", "s45", "s46"]
    soffF = ["0", "s47", "s44", "s48", "s45", "s49", "s46", "s50"]
    a("v_lshlrev_b32 v145, 13, v2")
    a("v_add_u32 v145, v145, v144")
    a("s_lshl_b32 s51, s3, 8")
    a(f"s_add_u32 s51, s51, {LDS_S}")
    a("v_min_u32 v146, 1, v3")
    a("v_lshlrev_b32 v146, 7, v146")
    a("v_lshl_add_u32 v146, v2, 1, v146")
    a("v_add_u32 v146, s51, v146")
    a("v_and_b32 v147, 1, v0")
    a("v_cmp_eq_u32 vcc, 1, v147")
    a("v_mov_b32 v148, 0xffff")
    a("v_mov_b32 v149, 0xffff0000")
    a("v_cndmask_b32 v147, v148, v149, vcc")
    a("v_lshrrev_b32 v148, 1, v3")
    for m in range(4):
        a(f"v_cmp_eq_u32 vcc, {m}, v148")
        a("s_nop 1")
        a(f"v_cndmask_b32 v{VMASK+m}, 0, v147, vcc")
    a("v_mov_b32 v3, v145")
    a("v_and_b32 v2, 15, v0")
    a("v_lshlrev_b32 v2, 13, v2")
    a("v_lshrrev_b32 v145, 4, v0")
    a("v_lshl_add_u32 v2, v145, 4, v2")
    def issueE(x):
        if skipE:
            a.done.add(f"E{x}"); return
        mt, ks = divmod(x, 2)
        r = VE + 4 * x
        a.issue(f"E{x}", f"buffer_load_dwordx4 v[{r}:{r+3}], v2, s[28:31], {soffE[mt]} offen offset:{64*ks} {polE}".rstrip())
    def issueF(x):
        if skipF:
            a.done.add(f"F{x}"); return
        r = VE + 4 * x
        a.issue(f"F{x}", f"buffer_load_dwordx4 v[{r}:{r+3}], v3, s[32:35], {soffF[x]} offen {polF}".rstrip())
    if epos is None:
        epos = [1, 3, 5, 7, 9, 11, 13, 15]
    vnext = 0
    ACC = 144
    for i in range(24):
        g, b = divmod(i, 3)
        if i == 0:
            a.wait("q2")
        a.wait(f"K{i}")
        r = KW0 + 4 * (i % W)
        for t in range(4):
            src2 = "0" if (b == 0 and t == 0) else f"v{ACC}"
            a(f"v_dot2_f32_bf16 v{ACC}, v{r+t}, v{VQ+4*b+t}, {src2}")
        if i + W < 24:
            issueK(i + W)
        else:
            issueV(vnext); vnext += 1
        for x, pos in enumerate(epos):
            if pos == i: issueE(x)
        if b == 2:
            a.nop(3)
            a(f"v_add_f32_dpp v{ACC}, v{ACC}, v{ACC} quad_perm:[1,0,3,2] row_mask:0xf bank_mask:0xf")
            a.nop(2)
            a(f"v_add_f32_dpp v{ACC}, v{ACC}, v{ACC} quad_perm:[2,3,0,1] row_mask:0xf bank_mask:0xf")
            a.nop(2)
            a(f"v_add_f32_dpp v{ACC}, v{ACC}, v{ACC} row_half_mirror row_mask:0xf bank_mask:0xf")
            a(f"v_cvt_pk_bf16_f32 v147, v{ACC}, v{ACC}")
            a("v_and_b32 v148, 0xffff0000, v147")
            a(f"v_sub_f32 v148, v{ACC}, v148")
            a("v_cvt_pk_bf16_f32 v148, v148, v148")
            a("v_and_b32 v149, 7, v0")
            a("v_cmp_eq_u32 vcc, 0, v149")
            a("s_nop 1")
            a("v_cndmask_b32 v147, v148, v147, vcc")
            a("s_mov_b32 exec_lo, 0x03030303")
            a("s_mov_b32 exec_hi, 0x03030303")
            a(f"ds_write_b16 v146, v147 offset:{16*g}")
            a("s_mov_b64 exec, -1")
    if stamps: a("s_memrealtime s[62:63]")
    a("v_and_b32 v147, 1, v0")
    a("v_lshlrev_b32 v147, 7, v147")
    a("v_lshrrev_b32 v148, 4, v0")
    a("v_lshl_add_u32 v147, v148, 4, v147")
    a("v_add_u32 v147, s51, v147")
    TB = VV + 4 * 12
    assert vnext <= 12
    a("s_waitcnt lgkmcnt(0)")
    a(f"ds_read_b128 v[{TB}:{TB+3}], v147")
    a(f"ds_read_b128 v[{TB+4}:{TB+7}], v147 offset:64")
    a("s_lshl_b32 s52, s3, 9")
    a(f"s_add_u32 s52, s52, {LDS_SC}")
    a("v_and_b32 v148, 1, v0")
    a("v_lshlrev_b32 v148, 8, v148")
    a("v_lshrrev_b32 v149, 4, v0")
    a("v_lshl_add_u32 v148, v149, 4, v148")
    a("v_add_u32 v148, s52, v148")
    a.wait("E7")
    a("s_waitcnt lgkmcnt(0)")
    D = TB + 8
    for mt in range(4):
        a(f"v_mfma_f32_16x16x32_bf16 v[{D+4*mt}:{D+4*mt+3}], v[{VE+8*mt}:{VE+8*mt+3}], v[{TB}:{TB+3}], 0")
    for mt in range(4):
        a(f"v_mfma_f32_16x16x32_bf16 v[{D+4*mt}:{D+4*mt+3}], v[{VE+8*mt+4}:{VE+8*mt+7}], v[{TB+4}:{TB+7}], v[{D+4*mt}:{D+4*mt+3}]")
    a("s_mov_b32 exec_lo, 0x00030003")
    a("s_mov_b32 exec_hi, 0x00030003")
    a.nop(6)
    for mt in range(4):
        a(f"ds_write_b128 v148, v[{D+4*mt}:{D+4*mt+3}] offset:{64*mt}")
    a("s_mov_b64 exec, -1")
    a("s_waitcnt lgkmcnt(0)")
    a("s_barrier")
    if stamps: a("s_memrealtime s[64:65]")
    fnext = 0
    while vnext < 24:
        a.wait(f"V{vnext-W}")
        issueV(vnext); vnext += 1
        if fnext < 8:
            issueF(fnext); fnext += 1
        if vnext - 1 == PW:
            break
    assert fnext == 8
    rest = list(range(vnext, 24))
    a("s_barrier")
    if stamps: a("s_memrealtime s[66:67]")
    a("v_lshrrev_b32 v144, 3, v0")
    a("v_lshlrev_b32 v144, 5, v144")
    PJ = VQ
    a(f"ds_read_b128 v[{PJ}:{PJ+3}], v144 offset:{LDS_P}")
    a(f"ds_read_b128 v[{PJ+4}:{PJ+7}], v144 offset:{LDS_P+16}")
    a("s_lshl_b32 s52, s3, 9")
    a(f"s_add_u32 s52, s52, {LDS_W}")
    a("v_and_b32 v145, 15, v0")
    a("v_lshlrev_b32 v145, 5, v145")
    a("v_lshrrev_b32 v146, 4, v0")
    a("v_and_b32 v146, 1, v146")
    a("v_lshl_add_u32 v145, v146, 4, v145")
    a("v_add_u32 v145, s52, v145")
    a("v_add_u32 v144, s52, v144")
    a.wait("F7")
    a("s_waitcnt lgkmcnt(0)")
    WD = 12
    OP = 148
    first = True
    for j in range(8):
        a(f"v_cvt_pk_bf16_f32 v146, v{PJ+j}, v{PJ+j}")
        if hilo_p:
            a("v_and_b32 v147, 0xffff0000, v146")
            a(f"v_sub_f32 v147, v{PJ+j}, v147")
            a("v_cvt_pk_bf16_f32 v147, v147, v147")
        for part in range(2 if hilo_p else 1):
            src = 146 + part
            for m in range(4):
                a(f"v_and_b32 v{OP+m}, v{src}, v{VMASK+m}")
            a.nop(2)
            c = "0" if first else f"v[{WD}:{WD+3}]"
            first = False
            a(f"v_mfma_f32_16x16x32_bf16 v[{WD}:{WD+3}], v[{VE+4*j}:{VE+4*j+3}], v[{OP}:{OP+3}], {c}")
    a("s_mov_b32 exec_lo, 0x00ff00ff")
    a("s_mov_b32 exec_hi, 0xff00ff00")
    a.nop(6)
    a(f"ds_write_b128 v145, v[{WD}:{WD+3}]")
    a("s_mov_b64 exec, -1")
    a("s_waitcnt lgkmcnt(0)")
    WJ = VQ
    a(f"ds_read_b128 v[{WJ}:{WJ+3}], v144")
    a(f"ds_read_b128 v[{WJ+4}:{WJ+7}], v144 offset:16")
    a(f"ds_read_b128 v[{VE}:{VE+3}], v144 offset:256")
    a(f"ds_read_b128 v[{VE+4}:{VE+7}], v144 offset:272")
    for i in rest:
        a.wait(f"V{i-W}")
        issueV(i)
    a("s_mul_i32 s52, s3, 1536")
    a(f"s_add_u32 s52, s52, {LDS_O}")
    a("v_bfe_u32 v145, v0, 3, 1")
    a("v_mul_u32_u24 v145, 768, v145")
    a("v_and_b32 v146, 7, v0")
    a("v_lshl_add_u32 v145, v146, 5, v145")
    a("v_bfe_u32 v146, v0, 4, 1")
    a("v_lshl_add_u32 v145, v146, 4, v145")
    a("v_add_u32 v145, s52, v145")
    a("s_waitcnt lgkmcnt(0)")
    for j in range(8):
        a(f"v_add_f32 v{WJ+j}, v{WJ+j}, v{VE+j}")
    if not hilo_w:
        for g in range(8):
            a(f"v_cvt_pk_bf16_f32 v146, v{WJ+g}, v{WJ+g}")
            for m in range(4):
                a(f"v_and_b32 v{VE+4*g+m}, v146, v{VMASK+m}")
        for g in range(8):
            a.wait(f"V{3*g+2}")
            if g == 0: a.nop(2)
            for b in range(3):
                c = "0" if g == 0 else f"v[{VACC+4*b}:{VACC+4*b+3}]"
                r = VV + 4 * (3*g + b)
                a(f"v_mfma_f32_16x16x32_bf16 v[{VACC+4*b}:{VACC+4*b+3}], v[{VE+4*g}:{VE+4*g+3}], v[{r}:{r+3}], {c}")
    else:
        for g in range(8):
            a(f"v_cvt_pk_bf16_f32 v146, v{WJ+g}, v{WJ+g}")
            for m in range(4):
                a(f"v_and_b32 v{VE+4*g+m}, v146, v{VMASK+m}")
            a("v_and_b32 v147, 0xffff0000, v146")
            a(f"v_sub_f32 v{WJ+g}, v{WJ+g}, v147")
        for g in range(8):
            a(f"v_cvt_pk_bf16_f32 v146, v{WJ+g}, v{WJ+g}")
            if g > 0: a.nop(3)
            for m in range(4):
                a(f"v_and_b32 v{OP+m}, v146, v{VMASK+m}")
            a.wait(f"V{3*g+2}")
            a.nop(1)
            for b in range(3):
                c = "0" if g == 0 else f"v[{VACC+4*b}:{VACC+4*b+3}]"
                r = VV + 4 * (3*g + b)
                a(f"v_mfma_f32_16x16x32_bf16 v[{VACC+4*b}:{VACC+4*b+3}], v[{VE+4*g}:{VE+4*g+3}], v[{r}:{r+3}], {c}")
            for b in range(3):
                r = VV + 4 * (3*g + b)
                a(f"v_mfma_f32_16x16x32_bf16 v[{VACC+4*b}:{VACC+4*b+3}], v[{OP}:{OP+3}], v[{r}:{r+3}], v[{VACC+4*b}:{VACC+4*b+3}]")
    if stamps: a("s_memrealtime s[68:69]")
    a("s_mov_b32 exec_lo, 0x00ff00ff")
    a("s_mov_b32 exec_hi, 0xff00ff00")
    a.nop(6)
    for b in range(3):
        a(f"ds_write_b128 v145, v[{VACC+4*b}:{VACC+4*b+3}] offset:{256*b}")
    a("s_mov_b64 exec, -1")
    a("s_waitcnt lgkmcnt(0)")
    a("s_barrier")
    if stamps:
        a("s_waitcnt lgkmcnt(0)")
        a("s_lshl_b32 s52, s2, 10")
        a("s_lshl_b32 s54, s3, 6")
        a("s_add_u32 s52, s52, s54")
        a("s_add_u32 s52, s52, 0x100000")
        a("v_mov_b32 v1, s52")
        for k, sr in enumerate([60, 62, 64, 66, 68]):
            a(f"v_mov_b32 v2, s{sr}"); a(f"v_mov_b32 v3, s{sr+1}")
            a("s_mov_b64 exec, 1")
            a(f"global_store_dwordx2 v1, v[2:3], s[18:19] offset:{8*k}")
            a("s_mov_b64 exec, -1")
            a("s_nop 1")
    a("s_endpgm")

    a.label("L_ctrl")
    a.vm = []
    a("s_waitcnt lgkmcnt(0)")
    a("s_lshl_b32 s38, s53, 10")
    a("s_add_u32 s20, s18, s38"); a("s_addc_u32 s21, s19, 0")
    a("s_lshl_b32 s38, s36, 13")
    a("s_add_u32 s38, s38, 4096")
    a("s_add_u32 s22, s18, s38"); a("s_addc_u32 s23, s19, 0")
    a("s_lshl_b32 s38, s36, 2")
    a("s_add_u32 s24, s16, s38"); a("s_addc_u32 s25, s17, 0")
    a("v_lshlrev_b32 v1, 4, v0")
    a("v_mov_b32 v4, -1"); a("v_mov_b32 v5, -1"); a("v_mov_b32 v6, -1"); a("v_mov_b32 v7, -1")
    a("global_store_dwordx4 v1, v[4:7], s[20:21] sc1")
    if prefetch_code:
        a("s_getpc_b64 s[26:27]")
        a.label("L_pc")
        a(f"s_sub_u32 s26, s26, L_pc-{KNAME}")
        a("s_subb_u32 s27, s27, 0")
        a("v_lshlrev_b32 v8, 4, v0")
        for k in range(prefetch_code):
            a(f"global_load_dwordx4 v[12:15], v8, s[26:27]")
            a("v_add_u32 v8, 1024, v8")
    a("s_waitcnt vmcnt(0)")
    a("v_mov_b32 v2, 0"); a("v_mov_b32 v3, 1")
    a("s_mov_b64 exec, 1")
    a("global_atomic_add v2, v3, s[24:25]")
    a("s_mov_b32 s30, 0")
    a.label("L_poll0")
    a("global_load_dword v8, v2, s[24:25] sc1")
    a("s_waitcnt vmcnt(0)")
    a("v_readfirstlane_b32 s31, v8")
    a("s_add_u32 s30, s30, 1")
    a("s_cmp_gt_u32 s30, 200000")
    a("s_cbranch_scc1 L_poll0_done")
    a("s_cmp_ge_u32 s31, 8")
    a("s_cbranch_scc1 L_poll0_done")
    if nopoll: a("s_branch L_poll0_done")
    a(f"s_sleep {sleep0}")
    a("s_branch L_poll0")
    a.label("L_poll0_done")
    a("s_mov_b64 exec, -1")
    a("v_lshlrev_b32 v1, 2, v0")
    a(f"v_add_u32 v2, {LDS_SC}, v1")
    a("s_barrier")
    if stamps: a("s_memrealtime s[60:61]")
    for sl in range(16):
        a(f"ds_read_b32 v{8+sl}, v2 offset:{256*sl}")
    a("s_waitcnt lgkmcnt(8)")
    for k in range(4):
        a(f"v_add_f32 v{8+k}, v{8+k}, v{12+k}")
    a("s_waitcnt lgkmcnt(0)")
    for k in range(4):
        a(f"v_add_f32 v{16+k}, v{16+k}, v{20+k}")
    for k in range(4):
        a(f"v_add_f32 v{8+k}, v{8+k}, v{16+k}")
    a("v_add_f32 v8, v8, v9"); a("v_add_f32 v10, v10, v11"); a("v_add_f32 v8, v8, v10")
    a("global_store_dword v1, v8, s[20:21] sc1")
    a("s_mov_b32 s30, 0")
    a.label("L_poll1")
    for cc in range(8):
        a(f"global_load_dword v{8+cc}, v1, s[22:23] offset:{(cc-4)*1024} sc1")
    a("s_waitcnt vmcnt(0)")
    a("v_cmp_eq_u32 vcc, -1, v8")
    for cc in range(1, 8):
        a(f"v_cmp_eq_u32 s[32:33], -1, v{8+cc}")
        a("s_or_b64 vcc, vcc, s[32:33]")
    a("s_add_u32 s30, s30, 1")
    a("s_cmp_gt_u32 s30, 200000")
    a("s_cbranch_scc1 L_poll1_done")
    a("s_cbranch_vccz L_poll1_done")
    if nopoll: a("s_branch L_poll1_done")
    if sleep: a(f"s_sleep {sleep}")
    a("s_branch L_poll1")
    a.label("L_poll1_done")
    if stamps: a("s_memrealtime s[62:63]")
    a("v_add_f32 v8, v8, v9"); a("v_add_f32 v10, v10, v11"); a("v_add_f32 v12, v12, v13"); a("v_add_f32 v14, v14, v15")
    a("v_add_f32 v8, v8, v10"); a("v_add_f32 v12, v12, v14"); a("v_add_f32 v8, v8, v12")
    import math, struct
    sc = (192 ** -0.5) * math.log2(math.e)
    scb = struct.unpack("<I", struct.pack("<f", sc))[0]
    a(f"v_mul_f32 v8, {hex(scb)}, v8")
    a("v_mov_b32 v9, v8")
    def allreduce(op, reg):
        for ctl in ["quad_perm:[1,0,3,2]", "quad_perm:[2,3,0,1]", "row_half_mirror", "row_mirror"]:
            a.nop(2)
            a(f"{op}_dpp v{reg}, v{reg}, v{reg} {ctl} row_mask:0xf bank_mask:0xf")
        a.nop(2)
        a(f"{op}_dpp v{reg}, v{reg}, v{reg} row_bcast:15 row_mask:0xa bank_mask:0xf")
        a.nop(2)
        a(f"{op}_dpp v{reg}, v{reg}, v{reg} row_bcast:31 row_mask:0xc bank_mask:0xf")
        a.nop(1)
    allreduce("v_max_f32", 9)
    a("v_readlane_b32 s31, v9, 63")
    a.nop(2)
    a("v_subrev_f32 v8, s31, v8")
    a("v_exp_f32 v8, v8")
    a.nop(1)
    a("v_mov_b32 v9, v8")
    allreduce("v_add_f32", 9)
    a("v_readlane_b32 s31, v9, 63")
    a.nop(2)
    a("v_mov_b32 v9, s31")
    a("v_rcp_f32 v9, v9")
    a.nop(1)
    a("v_mul_f32 v8, v8, v9")
    a("v_and_b32 v10, 7, v0")
    a("v_lshlrev_b32 v10, 5, v10")
    a("v_lshrrev_b32 v11, 3, v0")
    a("v_lshl_add_u32 v10, v11, 2, v10")
    a(f"ds_write_b32 v10, v8 offset:{LDS_P}")
    a("v_lshlrev_b32 v1, 4, v0")
    a(f"v_add_u32 v2, {LDS_O}, v1")
    a("v_and_b32 v3, 7, v0")
    a("v_lshlrev_b32 v3, 10, v3")
    a("v_lshrrev_b32 v4, 3, v0")
    a("v_lshl_add_u32 v3, v4, 4, v3")
    a("s_mul_i32 s34, s37, 96")
    a("s_add_u32 s34, s34, 256")
    a("v_add_u32 v3, s34, v3")
    a("s_sub_u32 s22, s22, 4096"); a("s_subb_u32 s23, s23, 0")
    a("s_mul_i32 s34, s36, 384"); a("s_mul_i32 s35, s37, 48"); a("s_add_u32 s34, s34, s35")
    a("s_add_u32 s14, s14, s34"); a("s_addc_u32 s15, s15, 0")
    a("v_lshlrev_b32 v5, 3, v4")
    a("s_waitcnt lgkmcnt(0)")
    a("s_barrier")
    if stamps: a("s_memrealtime s[64:65]")
    a("s_barrier")
    if stamps: a("s_memrealtime s[66:67]")
    a("s_mov_b32 exec_lo, -1"); a("s_mov_b32 exec_hi, 0x0000ffff")
    R = 8
    for sl in range(16):
        a(f"ds_read_b128 v[{R+4*sl}:{R+4*sl+3}], v2 offset:{768*sl}")
    a("s_waitcnt lgkmcnt(8)")
    for half in range(2):
        base = R + 32 * half
        if half == 1: a("s_waitcnt lgkmcnt(0)")
        for st in (16, 8, 4):
            for k in range(0, st, 2):
                a(f"v_pk_add_f32 v[{base+k}:{base+k+1}], v[{base+k}:{base+k+1}], v[{base+st+k}:{base+st+k+1}]")
    a(f"v_pk_add_f32 v[{R}:{R+1}], v[{R}:{R+1}], v[{R+32}:{R+33}]")
    a(f"v_pk_add_f32 v[{R+2}:{R+3}], v[{R+2}:{R+3}], v[{R+34}:{R+35}]")
    a(f"global_store_dwordx4 v1, v[{R}:{R+3}], s[20:21] offset:256 sc1")
    a("s_mov_b32 s30, 0")
    a.label("L_poll2")
    a(f"global_load_dwordx4 v[{R+4}:{R+7}], v3, s[22:23] sc1")
    a("s_waitcnt vmcnt(0)")
    a(f"v_cmp_eq_u32 vcc, -1, v{R+4}")
    for k in range(1, 4):
        a(f"v_cmp_eq_u32 s[32:33], -1, v{R+4+k}")
        a("s_or_b64 vcc, vcc, s[32:33]")
    a("s_add_u32 s30, s30, 1")
    a("s_cmp_gt_u32 s30, 200000")
    a("s_cbranch_scc1 L_poll2_done")
    a("s_cbranch_vccz L_poll2_done")
    if nopoll: a("s_branch L_poll2_done")
    a("s_branch L_poll2")
    a.label("L_poll2_done")
    if stamps: a("s_memrealtime s[68:69]")
    for ctl in ["quad_perm:[1,0,3,2]", "quad_perm:[2,3,0,1]", "row_half_mirror"]:
        for k in range(4):
            a(f"v_add_f32_dpp v{R+4+k}, v{R+4+k}, v{R+4+k} {ctl} row_mask:0xf bank_mask:0xf")
    a(f"v_cvt_pk_bf16_f32 v{R+4}, v{R+4}, v{R+5}")
    a(f"v_cvt_pk_bf16_f32 v{R+5}, v{R+6}, v{R+7}")
    a("s_mov_b32 exec_lo, 0x01010101"); a("s_mov_b32 exec_hi, 0x00000101")
    a(f"global_store_dwordx2 v5, v[{R+4}:{R+5}], s[14:15]")
    if stamps:
        a("s_memrealtime s[70:71]")
        a("s_waitcnt lgkmcnt(0)")
        a("s_lshl_b32 s52, s2, 10")
        a("s_add_u32 s52, s52, 0x100000+512")
        a("s_mov_b64 exec, 1")
        a("v_mov_b32 v1, s52")
        for k, sr in enumerate([60, 62, 64, 66, 68, 70]):
            a(f"v_mov_b32 v2, s{sr}"); a(f"v_mov_b32 v3, s{sr+1}")
            a(f"global_store_dwordx2 v1, v[2:3], s[18:19] offset:{8*k}")
            a("s_nop 1")
    a.label("L_end")
    a("s_endpgm")
    tail = []
    tail.append('.section .rodata,"a"')
    tail.append('.p2align 6')
    tail.append(f'.amdhsa_kernel {KNAME}')
    tail.append('  .amdhsa_next_free_vgpr 168')
    tail.append('  .amdhsa_next_free_sgpr 80')
    tail.append('  .amdhsa_accum_offset 168')
    tail.append('  .amdhsa_group_segment_fixed_size 0')
    tail.append('  .amdhsa_kernarg_size 64')
    tail.append('  .amdhsa_user_sgpr_count 2')
    tail.append('  .amdhsa_user_sgpr_kernarg_segment_ptr 1')
    tail.append('  .amdhsa_system_sgpr_workgroup_id_x 1')
    tail.append('  .amdhsa_float_denorm_mode_32 3')
    tail.append('.end_amdhsa_kernel')
    return "\n".join(hdr + a.L + tail) + "\n"

if __name__ == "__main__":
    for arg in sys.argv[1:]:
        name, _, kv = arg.partition(":")
        d = {}
        if kv:
            for p in kv.split(","):
                k, v = p.split("=")
                d[k] = int(v) if v.lstrip("-").isdigit() else v.replace("+", " ").replace("none", "")
        open(name + ".s", "w").write(gen(**d))
```

```python
import sys, math, struct

KNAME = "standalone__low_rank_proj_linformer__decode_kernel"


class Asm:
    def __init__(self):
        self.L = []
        self.vm = []
        self.done = set()

    def __call__(self, s):
        self.L.append("  " + s)

    def label(self, s):
        self.L.append(s + ":")

    def issue(self, name, s):
        self.L.append("  " + s)
        self.vm.append(name)

    def wait(self, name):
        if name in self.done:
            return
        i = self.vm.index(name)
        n = len(self.vm) - 1 - i
        assert n <= 63
        self.L.append(f"  s_waitcnt vmcnt({n})")
        self.done.update(self.vm[:i + 1])
        self.vm = self.vm[i + 1:]

    def count_for(self, name):
        if name in self.done:
            return None
        return len(self.vm) - 1 - self.vm.index(name)

    def waitall(self):
        self.L.append("  s_waitcnt vmcnt(0)")
        self.done.update(self.vm)
        self.vm = []

    def nop(self, n):
        while n > 0:
            k = min(n, 16)
            self.L.append(f"  s_nop {k-1}")
            n -= k


def gen(W=4, polK='nt', polV='nt', polE='nt', polF='nt', polQ='', stamps=0, cw=8, pp=1, psl=0, pp2=1, psl2=0,
        wsbase=0x0F000000, padA=32, padB=128, prio=1, spin_sleep=1, bound=40000, nopoll=0, skipEF=0,
        pat='T', nostore=0, noctrlwork=0, layA='C', layB='p', layO='C', pretouch=0, polS='sc1', storemask=0, polL='sc1', grp='h', polS2='sc1', polL2='sc1', adapt=0, tmo=24, swap=0, WV=0, WV2=0, VS=99, epst=0, Wk0=0, n0=0, wso=0x200000, touch=0, pl=0, polP='', tl=0, rot=0, thr=0, thrK0=99, thrV1=0, par=0, c24=0, dbgts=0, qpos=0, co=0, x1=0, x2=0, wb='', ws='', ef4=0, wpat='', rk=0, rkA=22, rkB=26, rkC=3, rkMax=20):
    a = Asm()
    NWG = 256
    WV = WV or W
    if adapt:
        assert layA == 'P' and layO == 'P' and padB == 128 and pp == 1
    LDS_E = 0
    LDS_F = 16384
    LDS_O = 32768
    LDS_W = 45056
    LDS_S = 47104
    SSTR = 272
    LDS_P = 49280
    PSTR = 144
    LDS_C = 50432
    LDS_END = 50448
    WS_EP = 0
    WS_A = 0x10000
    WS_B = 0x80000 if padA <= 32 else 0x180000
    WS_O = wso
    WS_ST = 0x400000
    assert WS_A + 8 * 32 * 32 * padA <= WS_B

    hdr = []
    hdr.append(f"; @launch grid=({NWG},1,1) block=(576,1,1) lds={LDS_END}")
    hdr.append('.amdgcn_target "amdgcn-amd-amdhsa--gfx950"')
    hdr.append('.text')
    hdr.append(f'.globl {KNAME}')
    hdr.append('.p2align 8')
    hdr.append(f'.type {KNAME},@function')
    hdr.append(f'{KNAME}:')

    def stamp(r):
        if stamps:
            a(f"s_memrealtime s[{r}:{r+1}]")

    a(f"s_cmp_ge_u32 s2, {NWG}")
    a("s_cbranch_scc1 L_end")
    stamp(60)
    a("s_load_dwordx16 s[4:19], s[0:1], 0")
    a("v_lshrrev_b32 v1, 6, v0")
    a("v_and_b32 v0, 63, v0")
    if swap:
        a("s_xor_b32 s38, s2, 1")
        a("s_cmp_lt_u32 s2, 2")
        a("s_cselect_b32 s2, s38, s2")
    if grp == 'h':
        a("s_lshr_b32 s36, s2, 5")
    else:
        a("s_and_b32 s36, s2, 7")
    a("v_readfirstlane_b32 s3, v1")
    if grp == 'h':
        a("s_and_b32 s37, s2, 31")
    else:
        a("s_lshr_b32 s37, s2, 3")
    a("s_lshl_b32 s33, s36, 5")
    a("s_add_u32 s33, s33, s37")
    a("s_cmp_eq_u32 s3, 8")
    a("s_cbranch_scc1 L_ctrl")

    VQ = 4; VE = 16; VV = 48
    KW0 = 144 - 4 * W
    VMASK = 152
    VACC = 156
    a("v_lshrrev_b32 v2, 3, v0")
    a("v_and_b32 v3, 7, v0")
    a("v_lshlrev_b32 v144, 4, v3")
    if pat == 'T':
        a("v_mul_u32_u24 v1, 3072, v2")
    else:
        a("v_mul_u32_u24 v1, 384, v2")
    a("v_add_u32 v1, v1, v144")
    a("s_lshr_b32 s38, s3, 1")
    a("s_and_b32 s39, s3, 1")
    a("s_lshl_b32 s40, s36, 2")
    a("s_add_u32 s40, s40, s38")
    a("s_mul_i32 s41, s40, 1572864")
    a("s_mul_i32 s42, s37, 49152")
    a("s_add_u32 s41, s41, s42")
    a("s_mul_i32 s42, s39, 24576")
    a("s_add_u32 s41, s41, s42")
    a("s_mul_i32 s42, s40, 384")
    if qpos:
        a("s_mov_b32 s22, 24576"); a("s_mov_b32 s23, 0x20000")
    a("s_waitcnt lgkmcnt(0)")
    stamp(70)
    def issueQ():
        a("s_add_u32 s4, s4, s42")
        a("s_addc_u32 s5, s5, 0")
        for b in range(3):
            a.issue(f"q{b}", f"global_load_dwordx4 v[{VQ+4*b}:{VQ+4*b+3}], v144, s[4:5] offset:{128*b} {polQ}".rstrip())
    if not qpos:
        issueQ()
        a("s_add_u32 s20, s6, s41"); a("s_addc_u32 s21, s7, 0"); a("s_mov_b32 s22, 24576"); a("s_mov_b32 s23, 0x20000")
    else:
        a("s_add_u32 s20, s6, s41"); a("s_addc_u32 s21, s7, 0")
    if pat != 'T':
        a("s_movk_i32 s44, 6144"); a("s_movk_i32 s45, 12288"); a("s_movk_i32 s46, 18432")

    def kv_addr(i):
        g, b = divmod(i, 3)
        if pat == 'T':
            return "0", g * 384 + b * 128
        return ["0", "s44", "s45", "s46"][g >> 1], (g & 1) * 3072 + b * 128

    def issueK(i):
        so, im = kv_addr(i)
        r = KW0 + 4 * (i % W)
        a.issue(f"K{i}", f"buffer_load_dwordx4 v[{r}:{r+3}], v1, s[20:23], {so} offen offset:{im} {polK}".rstrip())

    def issueV(i):
        so, im = kv_addr(i)
        r = VV + 4 * i
        a.issue(f"V{i}", f"buffer_load_dwordx4 v[{r}:{r+3}], v1, s[24:27], {so} offen offset:{im} {polV}".rstrip())
    kissued = 0
    graded = bool(wb or ws or wpat)
    if graded:
        assert W == 4 and WV == 3
        nb = [int(x) for x in (wb or "0/0/0/0/0/0/0/0").split("/")]
        ns = [int(x) for x in (ws or "0/0/0/0/0/0/0/0").split("/")]
        nb4, ns4 = list(nb), list(ns)
        nb = [63 if x == 15 else x for x in nb]; ns = [63 if x == 15 else x for x in ns]
    for i in range(3 if graded else (Wk0 if (Wk0 and n0) else W)):
        issueK(i); kissued += 1
        if qpos and kissued == qpos: issueQ()
    ngate = [0]
    def gate(m):
        L = [f"K{x}" for x in range(24)] + [f"V{x}" for x in range(24)]
        if wpat:
            pt = [int(x) for x in str(wpat).split("/")]
            if m - pt[m % len(pt)] >= 0: a.wait(L[m - pt[m % len(pt)]])
            return
        ngate[0] += 1
        lab = f"L_gate{ngate[0]}"
        boosted = m - 3 < max(nb)
        slowed = m - 3 < max(ns)
        c3 = a.count_for(L[m - 3]); c2 = a.count_for(L[m - 2])
        if boosted:
            a(f"s_cmp_gt_u32 s56, {m-3}")
            a(f"s_cbranch_scc1 {lab}")
            if c3 is not None: a(f"s_waitcnt vmcnt({c3})")
        else:
            a.wait(L[m - 3])
        if slowed:
            a(f"s_cmp_gt_u32 s57, {m-3}")
            a(f"s_cbranch_scc0 {lab}")
            if c2 is not None: a(f"s_waitcnt vmcnt({c2})")
        if boosted or slowed: a.label(lab)
    if graded:
        pk = lambda v: sum(x << (4 * k) for k, x in enumerate(v))
        a("s_lshl_b32 s55, s3, 2")
        a(f"s_lshr_b32 s56, {hex(pk(nb4))}, s55"); a("s_and_b32 s56, s56, 15")
        a(f"s_lshr_b32 s57, {hex(pk(ns4))}, s55"); a("s_and_b32 s57, s57, 15")
        for r in (56, 57):
            a(f"s_cmp_eq_u32 s{r}, 15"); a(f"s_cselect_b32 s{r}, 63, s{r}")
    a("s_add_u32 s24, s8, s41"); a("s_addc_u32 s25, s9, 0"); a("s_mov_b32 s26, 24576"); a("s_mov_b32 s27, 0x20000")
    if touch & 4:
        a("s_mov_b64 exec, 1")
        a.issue("tv0", f"buffer_load_dword v156, v1, s[24:27], 0 offen {polV}".rstrip())
        a("s_mov_b64 exec, -1")
    a(f"s_mul_i32 s47, s38, {2*SSTR}")
    a("s_lshl_b32 s48, s39, 7")
    a("s_add_u32 s47, s47, s48")
    a(f"s_add_u32 s47, s47, {LDS_S}")
    if pat == 'T':
        a("v_lshlrev_b32 v146, 1, v0")
    else:
        a("v_lshlrev_b32 v146, 3, v3")
        a("v_add_u32 v146, v146, v2")
        a("v_lshlrev_b32 v146, 1, v146")
    a("v_add_u32 v146, s47, v146")
    a("v_and_b32 v147, 1, v0")
    a("v_cmp_eq_u32 vcc, 1, v147")
    a("v_mov_b32 v148, 0xffff")
    a("v_mov_b32 v149, 0xffff0000")
    a("v_cndmask_b32 v147, v148, v149, vcc")
    a("v_lshrrev_b32 v148, 1, v3")
    for m in range(4):
        a(f"v_cmp_eq_u32 vcc, {m}, v148")
        a("s_nop 1")
        a(f"v_cndmask_b32 v{VMASK+m}, 0, v147, vcc")
    a("s_lshl_b32 s47, s38, 9")
    a("s_lshl_b32 s48, s39, 8")
    a("s_add_u32 s47, s47, s48")
    a(f"s_add_u32 s47, s47, {LDS_W}")
    a(f"v_lshlrev_b32 v150, {5 if pat == 'T' else 2}, v2")
    a("v_add_u32 v150, s47, v150")
    a("s_mul_i32 s47, s38, 3072")
    a("s_mul_i32 s48, s39, 1536")
    a("s_add_u32 s47, s47, s48")
    a(f"s_add_u32 s47, s47, {LDS_O}")
    a("v_bfe_u32 v151, v0, 3, 1")
    a("v_mul_u32_u24 v151, 768, v151")
    a("v_lshl_add_u32 v151, v3, 5, v151")
    a("v_bfe_u32 v2, v0, 4, 1")
    a("v_lshl_add_u32 v151, v2, 4, v151")
    a("v_add_u32 v151, s47, v151")
    a(f"v_mov_b32 v2, {LDS_C}")
    a("v_mov_b32 v3, 1")
    a("s_mov_b32 s40, 0x01010101"); a("s_mov_b32 s41, 0x01010101")
    if thr:
        a(f"s_cmp_lt_u32 s36, {thr}")
        a("s_cselect_b64 vcc, -1, 0")
    nthr = [0]
    def throttle():
        nthr[0] += 1
        a(f"s_cbranch_vccz L_thr{nthr[0]}")
        a(f"s_waitcnt vmcnt({W-2})")
        a.label(f"L_thr{nthr[0]}")
    a("s_barrier")
    if graded:
        gate(3); issueK(3); kissued += 1
    vnext = 0
    ACC = 144; KEEP = 145
    for i in range(24):
        g, b = divmod(i, 3)
        if i == 0:
            a.wait("q2")
        a.wait(f"K{i}")
        if i == 0: stamp(72)
        r = KW0 + 4 * (i % W)
        for t in range(4):
            src2 = "0" if (b == 0 and t == 0) else f"v{ACC}"
            a(f"v_dot2_f32_bf16 v{ACC}, v{r+t}, v{VQ+4*b+t}, {src2}")
        tgt = i + 1 + (Wk0 if (Wk0 and i + 1 < n0) else W)
        while kissued + vnext < tgt:
            if thr and i >= thrK0: throttle()
            if graded: gate(kissued + vnext)
            if kissued < 24:
                issueK(kissued); kissued += 1
            else:
                issueV(vnext); vnext += 1
        if b == 2:
            a.nop(2)
            a(f"v_add_f32_dpp v{ACC}, v{ACC}, v{ACC} quad_perm:[1,0,3,2] row_mask:0xf bank_mask:0xf")
            a.nop(2)
            a(f"v_add_f32_dpp v{ACC}, v{ACC}, v{ACC} quad_perm:[2,3,0,1] row_mask:0xf bank_mask:0xf")
            a.nop(2)
            a(f"v_add_f32_dpp v{ACC}, v{ACC}, v{ACC} row_half_mirror row_mask:0xf bank_mask:0xf")
            a(f"v_cndmask_b32 v{KEEP}, v{KEEP}, v{ACC}, s[40:41]")
            a("s_lshl_b64 s[40:41], s[40:41], 1")
    stamp(62)
    a(f"v_cvt_pk_bf16_f32 v147, v{KEEP}, v{KEEP}")
    a("v_and_b32 v148, 0xffff0000, v147")
    a(f"v_sub_f32 v148, v{KEEP}, v148")
    a("v_cvt_pk_bf16_f32 v148, v148, v148")
    a("ds_write_b16 v146, v147")
    a(f"ds_write_b16 v146, v148 offset:{SSTR}")
    a("s_mov_b64 exec, 1")
    a("ds_add_u32 v2, v3")
    a("s_mov_b64 exec, -1")
    if rk:
        a("ds_read_b32 v149, v2 offset:4")
    while vnext < 24:
        wv = WV2 if vnext >= VS else WV
        if graded: gate(24 + vnext)
        elif vnext - wv >= 0: a.wait(f"V{vnext-wv}")
        if thr and vnext < thrV1: throttle()
        if rk and vnext < rkMax:
            a("s_waitcnt lgkmcnt(0)")
            a("v_readfirstlane_b32 s58, v149")
            if vnext + 1 < rkMax: a("ds_read_b32 v149, v2 offset:4")
            a(f"s_cmp_gt_u32 s58, {vnext}")
            a(f"s_cbranch_scc0 L_rk{vnext}")
            a(f"s_waitcnt vmcnt({wv-2})")
            a.label(f"L_rk{vnext}")
        issueV(vnext); vnext += 1
    stamp(64)
    a("s_barrier")
    stamp(66)
    WJ = VQ
    if pat == 'T':
        a(f"ds_read_b128 v[{WJ}:{WJ+3}], v150")
        a(f"ds_read_b128 v[{WJ+4}:{WJ+7}], v150 offset:16")
    else:
        for m in range(4):
            a(f"ds_read2_b32 v[{WJ+2*m}:{WJ+2*m+1}], v150 offset0:{16*m} offset1:{16*m+8}")
    if par:
        a("ds_read_b64 v[12:13], v2 offset:8")
    for g in range(8):
        if pat == 'T':
            if g == 0:
                a(f"s_waitcnt lgkmcnt({2 if par else 1})")
            if g == 4:
                a(f"s_waitcnt lgkmcnt({1 if par else 0})")
        elif g % 2 == 0:
            a(f"s_waitcnt lgkmcnt({3 - g // 2 + (1 if par else 0)})")
        a(f"v_cvt_pk_bf16_f32 v146, v{WJ+g}, v{WJ+g}")
        for m in range(4):
            a(f"v_and_b32 v{VE+4*g+m}, v146, v{VMASK+m}")
    if par:
        a("s_mul_i32 s42, s38, 48"); a("s_mul_i32 s43, s39, 24"); a("s_add_u32 s42, s42, s43")
        a("s_lshl_b32 s42, s42, 4")
        a("s_mul_i32 s43, s33, 3072"); a("s_add_u32 s42, s42, s43")
        a(f"s_add_u32 s42, s42, {wsbase + WS_O}")
        a("v_lshlrev_b32 v15, 4, v0")
        a("v_add_u32 v14, s42, v15")
        a("s_mul_i32 s42, s38, 3072"); a("s_mul_i32 s43, s39, 384"); a("s_add_u32 s42, s42, s43")
        a(f"s_add_u32 s42, s42, {LDS_O}")
        a("v_add_u32 v15, s42, v15")
        a("v_mov_b32 v3, 0xffffff00")
        a("s_waitcnt lgkmcnt(0)")
        a("v_readfirstlane_b32 s50, v12")
        a("v_readfirstlane_b32 s54, v13")
    for g in range(8):
        a.wait(f"V{3*g+2}")
        for b in range(3):
            c = "0" if g == 0 else f"v[{VACC+4*b}:{VACC+4*b+3}]"
            r = VV + 4 * (3 * g + b)
            a(f"v_mfma_f32_16x16x32_bf16 v[{VACC+4*b}:{VACC+4*b+3}], v[{VE+4*g}:{VE+4*g+3}], v[{r}:{r+3}], {c}")
    stamp(68)
    a("s_mov_b32 exec_lo, 0x00ff00ff")
    a("s_mov_b32 exec_hi, 0xff00ff00")
    a.nop(6)
    for b in range(3):
        a(f"ds_write_b128 v151, v[{VACC+4*b}:{VACC+4*b+3}] offset:{256*b}")
    a("s_mov_b64 exec, -1")
    a("s_waitcnt lgkmcnt(0)")
    a("s_barrier")
    if par:
        a("s_mov_b64 exec, 0xffffff")
        for sl in range(4):
            a(f"ds_read_b128 v[{16+4*sl}:{19+4*sl}], v15 offset:{768*sl}")
        a("s_cmp_lg_u32 s54, 0")
        a("s_waitcnt lgkmcnt(2)")
        for t in range(0, 4, 2):
            a(f"v_pk_add_f32 v[{16+t}:{17+t}], v[{16+t}:{17+t}], v[{20+t}:{21+t}]")
        a("s_waitcnt lgkmcnt(0)")
        for t in range(0, 4, 2):
            a(f"v_pk_add_f32 v[{24+t}:{25+t}], v[{24+t}:{25+t}], v[{28+t}:{29+t}]")
        for t in range(0, 4, 2):
            a(f"v_pk_add_f32 v[{16+t}:{17+t}], v[{16+t}:{17+t}], v[{24+t}:{25+t}]")
        for t in range(4):
            a(f"v_and_or_b32 v{16+t}, v{16+t}, v3, s50")
        a("s_cbranch_scc1 L_par_wt")
        a("global_store_dwordx4 v14, v[16:19], s[18:19]")
        a.label("L_par_bk")
        a("s_mov_b64 exec, -1")
        a("s_barrier")
    if stamps:
        a("s_waitcnt lgkmcnt(0)")
        a("s_lshl_b32 s52, s2, 10")
        a("s_lshl_b32 s54, s3, 6")
        a("s_add_u32 s52, s52, s54")
        a(f"s_add_u32 s52, s52, {wsbase + WS_ST}")
        a("v_mov_b32 v1, s52")
        for k, sr in enumerate([60, 62, 64, 66, 68, 70, 72]):
            a(f"v_mov_b32 v2, s{sr}"); a(f"v_mov_b32 v3, s{sr+1}")
            a("s_mov_b64 exec, 1")
            a(f"global_store_dwordx2 v1, v[2:3], s[18:19] offset:{8*k}")
            a("s_mov_b64 exec, -1")
            a("s_nop 1")
    a("s_endpgm")

    a.label("L_ctrl")
    a.vm = []; a.done = set()
    if dbgts:
        a("s_memrealtime s[86:87]")
    if prio:
        a("s_setprio 3")
    if adapt:
        a("s_getreg_b32 s52, hwreg(HW_REG_XCC_ID, 0, 4)")
        a("s_mov_b32 s54, 0")
    a(f"v_mov_b32 v14, {LDS_C}")
    a("v_mov_b32 v15, 0")
    a("ds_write_b32 v14, v15")
    if rk: a("ds_write_b32 v14, v15 offset:4")
    a("s_waitcnt lgkmcnt(0)")
    a("s_barrier")
    a(f"s_add_u32 s20, s18, {wsbase}"); a("s_addc_u32 s21, s19, 0")
    a("s_lshl_b32 s38, s36, 7")
    a("v_mov_b32 v15, s38")
    a.issue("ep", "global_load_dword v16, v15, s[20:21] sc1")
    if touch & 1:
        a("v_mov_b32 v17, 0")
        a("s_mov_b64 exec, 1")
        a.issue("to", "global_load_dword v30, v17, s[14:15] nt")
        a("s_mov_b64 exec, -1")
    if touch & 2:
        a(f"s_mul_i32 s38, s33, 3072")
        a(f"s_add_u32 s38, s38, {WS_O}")
        a("v_mov_b32 v17, s38")
        a("s_mov_b64 exec, 1")
        a.issue("tw", "global_load_dword v31, v17, s[20:21] sc1")
        a("s_mov_b64 exec, -1")
    a("s_lshl_b32 s38, s37, 8")
    if x2 & 1:
        a("s_lshr_b32 s39, s37, 3"); a("s_lshl_b32 s55, s36, 2"); a("s_add_u32 s39, s39, s55"); a("s_lshl_b32 s39, s39, 8")
        a("s_add_u32 s24, s10, s39"); a("s_addc_u32 s25, s11, 0"); a("s_sub_u32 s26, 524288, s39"); a("s_mov_b32 s27, 0x20000")
    else:
        a("s_add_u32 s24, s10, s38"); a("s_addc_u32 s25, s11, 0"); a("s_sub_u32 s26, 524288, s38"); a("s_mov_b32 s27, 0x20000")
    if x2 & 2:
        a("s_lshr_b32 s39, s37, 3"); a("s_lshl_b32 s55, s36, 2"); a("s_add_u32 s39, s39, s55"); a("s_lshl_b32 s38, s39, 8")
    if x2 & 4:
        a("s_mov_b32 s24, s10"); a("s_mov_b32 s25, s11"); a("s_mov_b32 s26, 524288"); a("s_mov_b32 s38, 0")
    a("s_add_u32 s28, s12, s38"); a("s_addc_u32 s29, s13, 0"); a("s_sub_u32 s30, 524288, s38"); a("s_mov_b32 s31, 0x20000")
    a("v_lshrrev_b32 v14, 4, v0")
    a("v_and_b32 v15, 15, v0")
    a("v_xor_b32 v2, v14, v15")
    a("v_lshlrev_b32 v2, 4, v2")
    a("v_lshl_add_u32 v2, v14, 13, v2")
    if rot:
        a(f"s_mul_i32 s55, s36, {rot}")
        a("s_and_b32 s55, s55, 14")
        a("v_mov_b32 v17, v2")
        for k in range(4):
            a(f"s_add_u32 s38, s55, {k}")
            a("s_and_b32 s38, s38, 3")
            a("s_lshl_b32 s38, s38, 6")
            a(f"v_xor_b32 v{2+k}, s38, v17")
    else:
        for k in range(1, 4):
            a(f"v_xor_b32 v{2+k}, {64*k}, v2")
    a("v_lshlrev_b32 v6, 1, v14")
    a("v_xor_b32 v6, v6, v15")
    a("v_lshlrev_b32 v6, 4, v6")
    a("v_lshl_add_u32 v6, v14, 13, v6")
    if rot:
        a("s_lshl_b32 s38, s55, 6")
        a("s_and_b32 s38, s38, 128")
        a("v_xor_b32 v6, s38, v6")
    a("v_xor_b32 v7, 128, v6")
    def addr_pre():
        a("v_xor_b32 v8, v14, v15")
        a("v_lshlrev_b32 v8, 4, v8")
        a("v_lshl_add_u32 v8, v15, 8, v8")
        if LDS_E: a(f"v_add_u32 v8, {LDS_E}, v8")
        for k in range(1, 4):
            a(f"v_xor_b32 v{8+k}, {64*k}, v8")
        a("v_and_b32 v12, 7, v15")
        a(f"v_mul_u32_u24 v12, {SSTR}, v12")
        a("v_lshl_add_u32 v12, v14, 4, v12")
        a(f"v_add_u32 v12, {LDS_S}, v12")
        a("v_bfe_u32 v13, v0, 2, 2")
        a("v_and_b32 v16, 3, v0") if False else None
        a("v_lshl_add_u32 v17, v14, 3, v13")
        a("v_lshlrev_b32 v17, 8, v17")
        a("v_and_b32 v18, 1, v14")
        a("v_lshl_add_u32 v18, v18, 2, v13")
        a("v_lshl_add_u32 v17, v18, 5, v17")
        a("v_and_b32 v18, 3, v0")
        a("v_lshl_add_u32 v17, v18, 3, v17")
        a(f"v_add_u32 v13, {LDS_F}, v17")
        CA = 32 * padA
        if layA == 'C':
            a("v_lshrrev_b32 v17, 1, v15")
            a("v_lshlrev_b32 v17, 3, v17")
            a("v_and_b32 v18, 1, v15")
            a("v_lshl_add_u32 v17, v18, 1, v17")
            a("v_lshrrev_b32 v18, 1, v14")
            a("v_add_u32 v17, v17, v18")
            a(f"v_mul_u32_u24 v17, {CA}, v17")
            a("v_and_b32 v18, 1, v14")
            a("v_lshl_add_u32 v17, v18, 4, v17")
            a(f"s_mul_i32 s38, s36, {32*CA}")
            a(f"s_mul_i32 s39, s37, {padA}")
            a("s_add_u32 s38, s38, s39")
            a(f"s_add_u32 s38, s38, {WS_A}")
            a("v_add_u32 v160, s38, v17")
            a(f"v_add_u32 v161, {4*CA}, v160")
            a("v_and_b32 v17, 31, v0")
            a(f"v_mul_u32_u24 v17, {padA}, v17")
            a("v_lshrrev_b32 v18, 5, v0")
            a("v_lshl_add_u32 v17, v18, 4, v17")
            a(f"s_mul_i32 s38, s36, {32*CA}")
            a(f"s_mul_i32 s39, s37, {CA}")
            a("s_add_u32 s38, s38, s39")
            a(f"s_add_u32 s38, s38, {WS_A}")
            a("v_add_u32 v162, s38, v17")
        else:
            a("v_lshrrev_b32 v17, 1, v15")
            a("v_lshlrev_b32 v17, 8, v17")
            a("v_and_b32 v18, 1, v15")
            a("v_lshl_add_u32 v17, v18, 6, v17")
            a("v_lshl_add_u32 v17, v14, 4, v17")
            a("s_lshl_b32 s38, s33, 10")
            a(f"s_add_u32 s38, s38, {WS_A}")
            a("v_add_u32 v160, s38, v17")
            a("v_add_u32 v161, 128, v160")
            a("v_and_b32 v17, 31, v0")
            a("v_lshlrev_b32 v17, 10, v17")
            a("v_lshrrev_b32 v18, 5, v0")
            a("v_lshl_add_u32 v17, v18, 4, v17")
            a("s_lshl_b32 s38, s36, 15")
            a("s_lshl_b32 s39, s37, 5")
            a("s_add_u32 s38, s38, s39")
            a(f"s_add_u32 s38, s38, {WS_A}")
            a("v_add_u32 v162, s38, v17")
        a(f"s_mul_i32 s38, s36, {32*padB}")
        a(f"s_add_u32 s38, s38, {WS_B}")
        a(f"s_mul_i32 s39, s37, {padB}")
        a("s_add_u32 s39, s39, s38")
        a("v_lshrrev_b32 v18, 5, v0")
        a("v_lshlrev_b32 v17, 4, v18")
        if layB == 'F':
            assert padB == 128
            a("v_and_b32 v18, 3, v0")
            a("v_lshl_add_u32 v17, v18, 5, v17")
        a("v_add_u32 v163, s39, v17")
        a("v_lshrrev_b32 v17, 1, v0")
        a(f"v_mul_u32_u24 v17, {padB}, v17")
        a("v_and_b32 v18, 1, v0")
        a("v_lshl_add_u32 v17, v18, 4, v17")
        a("v_add_u32 v164, s38, v17")
        a(f"v_mul_u32_u24 v17, {2*PSTR}, v14")
        a("v_lshl_add_u32 v17, v15, 3, v17")
        a(f"v_add_u32 v165, {LDS_P}, v17")
        a("v_and_b32 v17, 7, v15")
        a(f"v_mul_u32_u24 v17, {PSTR}, v17")
        a("v_lshl_add_u32 v17, v14, 4, v17")
        a(f"v_add_u32 v166, {LDS_P}, v17")
        a("v_lshrrev_b32 v17, 1, v15")
        a("v_lshlrev_b32 v17, 9, v17")
        a("v_lshl_add_u32 v17, v14, 4, v17")
        a(f"v_add_u32 v167, {LDS_W}, v17")
        a("v_and_b32 v17, 1, v0")
        a("v_cmp_eq_u32 s[44:45], 1, v17")
        a("v_mov_b32 v1, 0xffffff00")

    VEt = 32
    def tags():
        a("v_readfirstlane_b32 s51, v16")
        a("s_add_u32 s51, s51, 1")
        a("s_and_b32 s50, s51, 0xff")
        if adapt:
            a("s_and_b32 s52, s52, 7")
            a("s_and_b32 s53, s50, 0xf8")
            a("s_or_b32 s53, s53, s52")
        if pretouch:
            a("s_xor_b32 s38, s50, 0x80")
            for k in range(4):
                a(f"v_mov_b32 v{24+k}, s38")
            a("v_lshlrev_b32 v20, 4, v0")
            if pretouch & 1:
                a("s_lshl_b32 s38, s33, 10")
                a(f"s_add_u32 s38, s38, {WS_A}")
                a("v_add_u32 v21, s38, v20")
                a.issue("pt_a", "global_store_dwordx4 v21, v[24:27], s[20:21]")
            if pretouch & 2:
                a("s_lshl_b32 s38, s33, 7")
                a(f"s_add_u32 s38, s38, {WS_B}")
                a("v_add_u32 v22, s38, v20")
                a("s_mov_b64 exec, 0xff")
                a.issue("pt_b", "global_store_dwordx4 v22, v[24:27], s[20:21]")
                a("s_mov_b64 exec, -1")
            if pretouch & 4:
                a(f"s_mul_i32 s38, s33, {OB}")
                a(f"s_add_u32 s38, s38, {WS_O}")
                a("v_add_u32 v23, s38, v20")
                for k in range(OB // 1024):
                    a.issue(f"pt_o{k}", f"global_store_dwordx4 v23, v[24:27], s[20:21] offset:{1024*k}" if k < 4 else f"global_store_dwordx4 v23, v[24:27], s[20:21] offset:{1024*k}")
    OB = 3072
    def claim(name, base, mul, nlines, dst):
        a(f"s_mul_i32 s38, s33, {mul}")
        a(f"s_add_u32 s38, s38, {base}")
        a("v_lshlrev_b32 v159, 7, v0")
        a("v_add_u32 v159, s38, v159")
        a(f"s_mov_b64 exec, {hex((1 << nlines) - 1)}")
        a.issue(name, f"global_load_dword v{dst}, v159, s[20:21] {polP}".rstrip())
        a("s_mov_b64 exec, -1")
    def e_regs():
        for mt in range(4):
            for ks in range(4):
                r = VEt + 16 * mt + 4 * ks
                a(f"ds_read_b128 v[{r}:{r+3}], v{8+ks} offset:{4096*mt}")
    dma = []
    if not skipEF:
        dma = [("E", x) for x in range(16)] + [("F", x) for x in range(16)]
    if ef4:
        a("s_and_b32 s38, s37, 0xfc"); a("s_lshl_b32 s38, s38, 8")
        a("s_add_u32 s24, s10, s38"); a("s_addc_u32 s25, s11, 0"); a("s_sub_u32 s26, 524288, s38")
        a("s_add_u32 s28, s12, s38"); a("s_addc_u32 s29, s13, 0"); a("s_sub_u32 s30, 524288, s38")
        for rr in range(4):
            a(f"s_add_u32 s38, s37, {rr if ef4 == 1 else 0}"); a("s_and_b32 s38, s38, 3")
            if ef4 == 2: a(f"s_mov_b32 s38, {rr}")
            a(f"s_lshl_b32 s{56+rr}, s38, 8")
        dma = [("E", x) for x in range(64)] + [("F", x) for x in range(64)]
    lastE = max([x for t, x in dma if t == "E"], default=-1)
    did_addr = False; did_e = False
    for n, (t, x) in enumerate(dma):
        if n >= cw:
            if not did_addr:
                addr_pre(); did_addr = True
            pt, px = dma[n - cw]
            a.wait(f"{pt}{px}")
            if n == cw: tags()
            if n == cw and (pl & 8):
                claim("cl_a", WS_A, 1024, 8, 158)
                claim("cl_b", WS_B, 128, 1, 157)
            if (pt, px) == ("F", 15 - cw) and (pl & 16):
                claim("cl_a", WS_A, 1024, 8, 158)
                claim("cl_b", WS_B, 128, 1, 157)
            if (pt, px) == ("E", lastE):
                e_regs(); did_e = True
        if rk and n == rkA:
            a("s_cmp_lg_u32 s37, 0")
            a("s_cbranch_scc1 L_nomark")
            a("s_lshl_b32 s38, s36, 2")
            a("v_mov_b32 v30, s38"); a("v_mov_b32 v31, 1")
            a("s_mov_b64 exec, 1")
            a("global_store_dword v30, v31, s[16:17] sc1")
            a("s_mov_b64 exec, -1")
            a.label("L_nomark")
        if rk and n == rkB:
            a("v_lshlrev_b32 v29, 2, v0")
            a("s_mov_b64 exec, 0xff")
            a.issue("smp", "global_load_dword v28, v29, s[16:17] sc1")
            a("s_mov_b64 exec, -1")
        if rot:
            a(f"s_add_u32 s39, s55, {x}")
            a("s_and_b32 s39, s39, 15")
            a("s_lshl_b32 s38, s39, 10")
            a(f"s_add_u32 m0, s38, {LDS_E if t == 'E' else LDS_F}")
            a("s_lshl_b32 s38, s39, 15")
        elif ef4:
            a(f"s_mov_b32 m0, {(LDS_E if t == 'E' else LDS_F) + 1024 * (x & 15)}")
            a(f"s_add_u32 s38, s{56 + (x >> 4)}, {32768 * (x & 15)}")
        else:
            a(f"s_mov_b32 m0, {(LDS_E if t == 'E' else LDS_F) + 1024 * x}")
            a(f"s_mov_b32 s38, {32768 * x}")
        if t == 'E':
            a.issue(f"E{x}", f"buffer_load_dwordx4 v{2 + (x & 3)}, s[24:27], s38 offen {polE} lds")
        else:
            a.issue(f"F{x}", f"buffer_load_dwordx4 v{6 + ((x >> 1) & 1)}, s[28:31], s38 offen {polF} lds")
    if not did_addr:
        addr_pre()
    if not did_e:
        a.wait(f"E{lastE}" if dma else "ep")
        if len(dma) <= cw: tags()
        e_regs()
    a.waitall()
    if rk:
        a("s_mov_b64 exec, 0xff")
        a("v_cmp_eq_u32 vcc, 0, v28")
        a("s_mov_b64 exec, -1")
        a("s_lshl_b32 s38, 1, s36")
        a("s_andn2_b32 s38, vcc_lo, s38")
        a("s_bcnt1_i32_b32 s38, s38")
        a(f"s_mul_i32 s39, s38, {rkC}")
        a("s_lshr_b32 s39, s39, 1")
        a("s_add_u32 s39, s39, 3")
        a("s_cmp_eq_u32 s38, 0")
        a("s_cselect_b32 s39, 0, s39")
        a(f"v_mov_b32 v28, {LDS_C}"); a("v_mov_b32 v29, s39")
        a("ds_write_b32 v28, v29 offset:4")
        if stamps: a("s_mov_b32 s81, s38")
    a("s_waitcnt lgkmcnt(0)")
    stamp(60)
    a(f"v_mov_b32 v14, {LDS_C}")
    a("s_mov_b32 s30, 0")
    a.label("L_spin")
    a("ds_read_b32 v17, v14")
    a("s_waitcnt lgkmcnt(0)")
    a("v_readfirstlane_b32 s31, v17")
    a("s_add_u32 s30, s30, 1")
    a(f"s_cmp_gt_u32 s30, {bound*8}")
    a("s_cbranch_scc1 L_spin_done")
    a("s_cmp_ge_u32 s31, 8")
    a("s_cbranch_scc1 L_spin_done")
    if spin_sleep: a(f"s_sleep {spin_sleep}")
    a("s_branch L_spin")
    a.label("L_spin_done")
    stamp(62)
    VB = 128
    VD = 16
    for ks in range(4):
        a(f"ds_read_b128 v[{VB+4*ks}:{VB+4*ks+3}], v12 offset:{64*ks}")
    for ks in range(4):
        a(f"s_waitcnt lgkmcnt({3-ks})")
        for mt in range(4):
            c = "0" if ks == 0 else f"v[{VD+4*mt}:{VD+4*mt+3}]"
            r = VEt + 16 * mt + 4 * ks
            a(f"v_mfma_f32_16x16x32_bf16 v[{VD+4*mt}:{VD+4*mt+3}], v[{r}:{r+3}], v[{VB+4*ks}:{VB+4*ks+3}], {c}")
    a.nop(8)
    for k in range(16):
        a(f"v_add_f32_dpp v{VD+k}, v{VD+k}, v{VD+k} quad_perm:[1,0,3,2] row_mask:0xf bank_mask:0xf")
    for x in range(2):
        for k in range(4):
            a(f"v_cndmask_b32 v{VB+4*x+k}, v{VD+8*x+k}, v{VD+8*x+4+k}, s[44:45]")
    for k in range(8):
        a(f"v_and_or_b32 v{VB+k}, v{VB+k}, v1, s{53 if (adapt and k % 4 == 3) else 50}")
    a("s_mov_b32 exec_lo, 0x00ff00ff"); a("s_mov_b32 exec_hi, 0x00ff00ff")
    if not nostore:
        if storemask:
            a(f"s_and_b32 s38, s2, {storemask}")
            a("s_cbranch_scc1 L_ns1")
        p1 = ("sc1" if x1 else "") if adapt else polS
        a(f"global_store_dwordx4 v160, v[{VB}:{VB+3}], s[20:21] {p1}".rstrip())
        a(f"global_store_dwordx4 v161, v[{VB+4}:{VB+7}], s[20:21] {p1}".rstrip())
        if storemask: a.label("L_ns1")
    a("s_mov_b64 exec, -1")
    stamp(64)
    def f_tr():
        for mt in range(8):
            if mt == 0:
                ad = 13
            else:
                a(f"v_xor_b32 v17, {32*mt}, v13")
                ad = 17
            for ks in range(2):
                for a4 in range(2):
                    r = VEt + 8 * mt + 4 * ks + 2 * a4
                    a(f"ds_read_b64_tr_b16 v[{r}:{r+1}], v{ad} offset:{8192*ks + 1024*a4}")

    def check(regs, tmp, die=False):
        n = len(regs)
        t = tmp
        a(f"v_bitop3_b32 v{t}, v{regs[0]}, v{regs[1]}, s50 bitop3:0x7e")
        if die:
            a(f"v_xor_b32 v{t+1}, s50, v{regs[2]}")
            a(f"v_or_b32 v{t}, v{t}, v{t+1}")
            a(f"v_xor_b32 v{t+1}, s50, v{regs[3]}")
            a(f"v_and_b32 v{t+1}, 0xf8, v{t+1}")
            a(f"v_or_b32 v{t}, v{t}, v{t+1}")
        else:
            for k in range(2, n, 2):
                a(f"v_bitop3_b32 v{t+1}, v{regs[k]}, v{regs[k+1]}, s50 bitop3:0x7e")
                a(f"v_or_b32 v{t}, v{t}, v{t+1}")
        a(f"v_and_b32 v{t}, 0xff, v{t}")
        a(f"v_cmp_ne_u32 vcc, 0, v{t}")

    ool = []

    def dual(name, stores):
        if not adapt:
            stores(None)
            return
        a("s_cmp_lg_u32 s54, 0")
        a(f"s_cbranch_scc1 L_{name}_wt")
        stores("")
        a.label(f"L_{name}_bk")
        ool.append((name, stores))

    def poll(name, loads, sets, res, depth, sleep, between=None, die=False):
        nl = loads(None)
        nreg = 4 * nl
        a("s_mov_b32 s30, 0")
        if depth == 1:
            loads(sets[0])
            if between: between()
            a.label(f"L_{name}")
            a("s_waitcnt vmcnt(0)")
            if stamps and name == "p2":
                a("s_cmp_lg_u32 s30, 0")
                a("s_cbranch_scc1 L_p2_ns")
                a("s_memrealtime s[84:85]")
                a.label("L_p2_ns")
            check(list(range(sets[0], sets[0] + nreg)), 14, die)
            a("s_add_u32 s30, s30, 1")
            a(f"s_cmp_gt_u32 s30, {bound}")
            a(f"s_cbranch_scc1 L_{name}_d")
            a(f"s_cbranch_vccz L_{name}_d")
            if nopoll: a(f"s_branch L_{name}_d")
            if die:
                a(f"s_cmp_eq_u32 s30, {tmo}")
                a("s_cbranch_scc1 L_rep_tmo")
                a.label("L_rep_tmo_bk")
            if sleep: a(f"s_sleep {sleep}")
            loads(sets[0])
            a(f"s_branch L_{name}")
            a.label(f"L_{name}_d")
            if res != sets[0]:
                for k in range(nreg):
                    a(f"v_mov_b32 v{res+k}, v{sets[0]+k}")
            return
        for s in range(depth - 1):
            loads(sets[s])
            if s == 0 and between: between()
            elif sleep: a(f"s_sleep {sleep}")
        a.label(f"L_{name}")
        for s in range(depth):
            loads(sets[(s + depth - 1) % depth])
            a(f"s_waitcnt vmcnt({(depth-1)*nl})")
            check(list(range(sets[s], sets[s] + nreg)), 14)
            a(f"s_cbranch_vccz L_{name}_d{s}")
            if nopoll: a(f"s_branch L_{name}_d{s}")
            if sleep: a(f"s_sleep {sleep}")
        a("s_add_u32 s30, s30, 1")
        a(f"s_cmp_gt_u32 s30, {bound}")
        a(f"s_cbranch_scc0 L_{name}")
        for s in range(depth - 1, -1, -1):
            a.label(f"L_{name}_d{s}")
            for k in range(nreg):
                a(f"v_mov_b32 v{res+k}, v{sets[s]+k}")
            if s:
                a(f"s_branch L_{name}_d")
        a.label(f"L_{name}_d")

    def ld1a(base):
        if base is None: return 1
        if nostore > 1: return
        a(f"global_load_dwordx4 v[{base}:{base+3}], v162, s[20:21] {polL}".rstrip())

    def ld1b(base):
        if base is None: return 1
        if nostore > 1: return
        a(f"global_load_dwordx4 v[{base}:{base+3}], v164, s[20:21] {polL}".rstrip())
    R = 16
    poll("p1a", ld1a, [144, 148, 152], R if pp > 1 else 144, pp, psl, between=f_tr, die=bool(adapt))
    R1 = R if pp > 1 else 144
    if adapt:
        a(f"v_xor_b32 v14, s53, v{R1+3}")
        a("v_and_b32 v14, 7, v14")
        a("v_cmp_ne_u32 vcc, 0, v14")
        a("s_cbranch_vccnz L_rep_die")
        a.label("L_rep_die_bk")
    stamp(66)
    if stamps: a("s_mov_b32 s78, s30")
    for k in range(4):
        a(f"v_and_b32 v{R1+k}, v{R1+k}, v1")
    for ctl, rm in [("quad_perm:[1,0,3,2]", "0xf"), ("quad_perm:[2,3,0,1]", "0xf"), ("row_half_mirror", "0xf"),
                    ("row_mirror", "0xf"), ("row_bcast:15", "0xa")]:
        for k in range(4):
            a(f"v_add_f32_dpp v{R1+k}, v{R1+k}, v{R1+k} {ctl} row_mask:{rm} bank_mask:0xf")
    for k in range(4):
        a(f"v_and_or_b32 v{R1+k}, v{R1+k}, v1, s50")
    if layB == 'F':
        a("s_mov_b32 exec_lo, 0x000f0000"); a("s_mov_b32 exec_hi, 0x000f0000")
    else:
        a("s_mov_b32 exec_lo, 0x80000000"); a("s_mov_b32 exec_hi, 0x80000000")
    if not nostore:
        if storemask:
            a(f"s_and_b32 s38, s2, {storemask}")
            a("s_cbranch_scc1 L_ns2")
        dual("s1b", lambda pol: a(f"global_store_dwordx4 v163, v[{R1}:{R1+3}], s[20:21] {polS if pol is None else pol}".rstrip()) if pol != 'wt' else a(f"global_store_dwordx4 v163, v[{R1}:{R1+3}], s[20:21] sc1"))
        if storemask: a.label("L_ns2")
    a("s_mov_b64 exec, -1")
    if pl & 1: claim("cl_o", WS_O, 3072, 24, 158)
    R2 = 20 if pp > 1 else 148
    poll("p1b", ld1b, [144, 148, 152] if pp > 1 else [148], R2, pp, psl)
    stamp(68)
    if stamps: a("s_mov_b32 s79, s30")
    sc = (192 ** -0.5) * math.log2(math.e)
    scb = struct.unpack("<I", struct.pack("<f", sc))[0]
    a(f"s_mov_b32 s38, {hex(scb)}")
    for k in range(4):
        a(f"v_and_b32 v{R2+k}, v{R2+k}, v1")
    for k in range(4):
        a(f"v_mul_f32 v{R2+k}, s38, v{R2+k}")
    a(f"v_max_f32 v24, v{R2}, v{R2+1}")
    a(f"v_max3_f32 v24, v{R2+2}, v{R2+3}, v24")
    for ctl in ["quad_perm:[1,0,3,2]", "quad_perm:[2,3,0,1]", "row_half_mirror", "row_mirror"]:
        a.nop(2)
        a(f"v_max_f32_dpp v24, v24, v24 {ctl} row_mask:0xf bank_mask:0xf")
    for k in range(4):
        a(f"v_sub_f32 v{R2+k}, v{R2+k}, v24")
    for k in range(4):
        a(f"v_exp_f32 v{R2+k}, v{R2+k}")
    a.nop(1)
    a(f"v_add_f32 v24, v{R2}, v{R2+1}")
    a(f"v_add_f32 v25, v{R2+2}, v{R2+3}")
    a("v_add_f32 v24, v24, v25")
    for ctl in ["quad_perm:[1,0,3,2]", "quad_perm:[2,3,0,1]", "row_half_mirror", "row_mirror"]:
        a.nop(2)
        a(f"v_add_f32_dpp v24, v24, v24 {ctl} row_mask:0xf bank_mask:0xf")
    a("v_rcp_f32 v24, v24")
    a.nop(1)
    for k in range(4):
        a(f"v_mul_f32 v{R2+k}, v{R2+k}, v24")
    a(f"v_cvt_pk_bf16_f32 v26, v{R2}, v{R2+1}")
    a(f"v_cvt_pk_bf16_f32 v27, v{R2+2}, v{R2+3}")
    a("v_lshlrev_b32 v28, 16, v26"); a("v_and_b32 v29, 0xffff0000, v26")
    a("v_lshlrev_b32 v30, 16, v27"); a("v_and_b32 v31, 0xffff0000, v27")
    for k in range(4):
        a(f"v_sub_f32 v{28+k}, v{R2+k}, v{28+k}")
    a("v_cvt_pk_bf16_f32 v28, v28, v29")
    a("v_cvt_pk_bf16_f32 v29, v30, v31")
    a("ds_write_b64 v165, v[26:27]")
    a(f"ds_write_b64 v165, v[28:29] offset:{PSTR}")
    a("s_waitcnt lgkmcnt(0)")
    a(f"ds_read_b128 v[{VB}:{VB+3}], v166")
    a(f"ds_read_b128 v[{VB+4}:{VB+7}], v166 offset:64")
    VW = 96
    for ks in range(2):
        a(f"s_waitcnt lgkmcnt({1-ks})")
        for mt in range(8):
            c = "0" if ks == 0 else f"v[{VW+4*mt}:{VW+4*mt+3}]"
            r = VEt + 8 * mt + 4 * ks
            a(f"v_mfma_f32_16x16x32_bf16 v[{VW+4*mt}:{VW+4*mt+3}], v[{r}:{r+3}], v[{VB+4*ks}:{VB+4*ks+3}], {c}")
    a("s_mov_b32 s46, 0x00550055"); a("s_mov_b32 s47, 0x00550055")
    a.nop(6)
    for mt in range(8):
        for k in range(4):
            a(f"v_add_f32_dpp v{VW+4*mt+k}, v{VW+4*mt+k}, v{VW+4*mt+k} quad_perm:[1,0,3,2] row_mask:0xf bank_mask:0xf")
    a("s_mov_b64 exec, s[46:47]")
    for mt in range(8):
        a(f"ds_write_b128 v167, v[{VW+4*mt}:{VW+4*mt+3}] offset:{64*mt}")
    a("s_mov_b64 exec, -1")
    if par:
        a(f"v_mov_b32 v17, {LDS_C}")
        a("v_mov_b32 v14, s50")
        a("v_mov_b32 v15, s54" if adapt else "v_mov_b32 v15, 0")
        a("ds_write_b64 v17, v[14:15] offset:8")
    a("s_waitcnt lgkmcnt(0)")
    if pl & 4: claim("cl_o", WS_O, 3072, 24, 158)
    a("s_barrier")
    stamp(70)
    if pl & 2: claim("cl_o", WS_O, 3072, 24, 158)
    NK = 4 if layO == 'Cf' else 3
    if layO == 'Cf':
        a("v_lshrrev_b32 v14, 3, v0")
        a("v_and_b32 v15, 7, v0")
        a("v_lshlrev_b32 v17, 12, v14")
        a("v_lshl_add_u32 v17, v15, 4, v17")
        a("s_mul_i32 s38, s36, 131072")
        a("s_lshl_b32 s39, s37, 7")
        a("s_add_u32 s38, s38, s39")
        a(f"s_add_u32 s38, s38, {WS_O}")
        a("v_add_u32 v2, s38, v17")
        for k in range(1, 4):
            a(f"v_add_u32 v{2+k}, {32768*k}, v2")
        a("v_mul_u32_u24 v17, 96, v14")
        a("v_lshl_add_u32 v17, v15, 4, v17")
        a(f"v_add_u32 v6, {LDS_O}, v17")
    else:
        for k in range(0 if par else 3):
            a(f"v_add_u32 v14, {64*k}, v0")
            a("v_mul_u32_u24 v15, 171, v14")
            a("v_lshrrev_b32 v15, 10, v15")
            if layO == 'C':
                a("v_mul_u32_u24 v17, 6, v15")
                a("v_sub_u32 v17, v14, v17")
                a("v_lshlrev_b32 v18, 12, v15")
                a("v_lshl_add_u32 v18, v17, 4, v18")
                a("s_mul_i32 s38, s36, 131072")
                a("s_lshl_b32 s39, s37, 7")
                a("s_add_u32 s38, s38, s39")
                a(f"s_add_u32 s38, s38, {WS_O}")
            else:
                a("v_lshlrev_b32 v18, 4, v14")
                a("s_mul_i32 s38, s33, 3072")
                a(f"s_add_u32 s38, s38, {WS_O}")
            a(f"v_add_u32 v{2+k}, s38, v18")
            a("v_lshrrev_b32 v15, 3, v15")
            a("v_mul_u32_u24 v17, 48, v15")
            a("v_sub_u32 v17, v14, v17")
            a("v_mul_u32_u24 v15, 3072, v15")
            a("v_lshl_add_u32 v15, v17, 4, v15")
            a(f"v_add_u32 v{5+k}, {LDS_O}, v15")
    if tl:
        assert layO == 'P'
        a("v_and_b32 v15, 7, v0")
        a("v_lshrrev_b32 v14, 3, v0")
    else:
        a("v_and_b32 v14, 7, v0")
        a("v_lshrrev_b32 v15, 3, v0")
    if layO == 'P':
        a("v_mul_u32_u24 v14, 3072, v14")
        a("v_lshl_add_u32 v14, v15, 4, v14")
        a("s_mul_i32 s38, s36, 98304")
        a(f"s_mul_i32 s39, s37, {128 if c24 else 96}")
    else:
        a("v_lshlrev_b32 v14, 7, v14")
        a("v_lshl_add_u32 v14, v15, 4, v14")
        a("s_mul_i32 s38, s36, 131072")
        a("s_lshl_b32 s39, s37, 12")
    a("s_add_u32 s38, s38, s39")
    a(f"s_add_u32 s38, s38, {WS_O}")
    a("v_add_u32 v8, s38, v14")
    if layO == 'P':
        for k in range(1, 4):
            a(f"v_add_u32 v{160+k}, {24576*k}, v8")
    a("s_mul_i32 s38, s36, 1536"); a(f"s_mul_i32 s39, s37, {64 if c24 else 48}"); a("s_add_u32 s38, s38, s39")
    a("s_add_u32 s14, s14, s38"); a("s_addc_u32 s15, s15, 0")
    a("v_lshlrev_b32 v9, 3, v15")
    if tl:
        a("v_lshrrev_b32 v14, 4, v0")
        a("v_lshl_add_u32 v9, v14, 1, v9")
    if co:
        m = "0x00ff00ff" if c24 else "0x003f003f"
        if c24:
            a("s_cmp_ge_u32 s37, 24")
            a("s_cbranch_scc1 L_noco")
        a(f"s_mov_b32 exec_lo, {m if co == 1 else '1'}"); a(f"s_mov_b32 exec_hi, {m if co == 1 else '0'}")
        a.issue("co", f"global_load_ushort v157, v9, s[14:15] {polP}".rstrip())
        a("s_mov_b64 exec, -1")
        if c24: a.label("L_noco")
    a("s_lshl_b32 s38, s36, 7")
    a("v_mov_b32 v10, s38")
    a("v_mov_b32 v11, s51")
    if epst == 2:
        a("s_cmp_lg_u32 s37, 0")
        a("s_cbranch_scc1 L_noep")
        a("s_mov_b64 exec, 1")
        a("global_store_dword v10, v11, s[20:21]")
        a("s_mov_b64 exec, -1")
        a.label("L_noep")
    elif not (pl & 6):
        a.waitall()
    a("s_barrier")
    stamp(72)
    RO = 32
    if par:
        assert layO == 'P'
        NK = 0
        a("s_barrier")
    for k in range(NK):
        for sl in range(4):
            r = RO + 16 * k + 4 * sl
            if layO == 'Cf':
                a(f"ds_read_b128 v[{r}:{r+3}], v6 offset:{3072*k + 768*sl}")
            else:
                a(f"ds_read_b128 v[{r}:{r+3}], v{5+k} offset:{768*sl}")
    for k in range(NK):
        a(f"s_waitcnt lgkmcnt({4*(NK-1-k)})")
        r = RO + 16 * k
        for t in range(0, 4, 2):
            a(f"v_pk_add_f32 v[{r+t}:{r+t+1}], v[{r+t}:{r+t+1}], v[{r+4+t}:{r+5+t}]")
            a(f"v_pk_add_f32 v[{r+8+t}:{r+9+t}], v[{r+8+t}:{r+9+t}], v[{r+12+t}:{r+13+t}]")
        for t in range(0, 4, 2):
            a(f"v_pk_add_f32 v[{r+t}:{r+t+1}], v[{r+t}:{r+t+1}], v[{r+8+t}:{r+9+t}]")
        for t in range(4):
            a(f"v_and_or_b32 v{r+t}, v{r+t}, v1, s50")
        dual(f"s2_{k}", lambda pol, k=k, r=r: a(f"global_store_dwordx4 v{2+k}, v[{r}:{r+3}], s[20:21] {polS2 if pol is None else ('sc1' if pol == 'wt' else '')}".rstrip()))
    stamp(82)
    if c24:
        assert tl and layO == 'P'
        if stamps: a("s_mov_b32 s80, 0"); a("s_mov_b32 s81, 0")
        a("s_cmp_ge_u32 s37, 24")
        a("s_cbranch_scc1 L_skip2")
    elif tl:
        a("s_mov_b32 exec_lo, 0x3f3f3f3f"); a("s_mov_b32 exec_hi, 0x3f3f3f3f")
    else:
        a("s_mov_b32 exec_lo, -1"); a("s_mov_b32 exec_hi, 0x0000ffff")

    def ld2(base):
        if base is None: return 4
        for k in range(4):
            if layO == 'P':
                a(f"global_load_dwordx4 v[{base+4*k}:{base+4*k+3}], v{8 if k == 0 else 160+k}, s[20:21] {polL2}".rstrip())
            else:
                a(f"global_load_dwordx4 v[{base+4*k}:{base+4*k+3}], v8, s[20:21] offset:{1024*k} {polL2}".rstrip())
    R3 = 16 if pp2 > 1 else 96
    poll("p2", ld2, [96, 112, 128], R3, pp2, psl2)
    stamp(74)
    if stamps: a("s_mov_b32 s80, s30"); a("s_mov_b32 s81, 0")
    for k in range(16):
        a(f"v_and_b32 v{R3+k}, v{R3+k}, v1")
    for k in range(4):
        a(f"v_add_f32 v{R3+k}, v{R3+k}, v{R3+4+k}")
        a(f"v_add_f32 v{R3+8+k}, v{R3+8+k}, v{R3+12+k}")
    for k in range(4):
        a(f"v_add_f32 v{R3+k}, v{R3+k}, v{R3+8+k}")
    if tl:
        a("s_mov_b64 exec, -1")
        for k in range(4):
            a(f"v_add_f32_dpp v{R3+k}, v{R3+k}, v{R3+k} row_ror:8 row_mask:0xf bank_mask:0xf")
        a.nop(1)
        a(f"v_permlane16_swap_b32 v{R3}, v{R3+1}")
        a(f"v_permlane16_swap_b32 v{R3+2}, v{R3+3}")
        a(f"v_add_f32 v{R3}, v{R3}, v{R3+1}")
        a(f"v_add_f32 v{R3+2}, v{R3+2}, v{R3+3}")
        a.nop(2)
        a(f"v_permlane32_swap_b32 v{R3}, v{R3+2}")
        a(f"v_add_f32 v{R3}, v{R3}, v{R3+2}")
        a(f"v_cvt_pk_bf16_f32 v{R3}, v{R3}, v{R3}")
        m = "0x00ff00ff" if c24 else "0x003f003f"
        a(f"s_mov_b32 exec_lo, {m}"); a(f"s_mov_b32 exec_hi, {m}")
        a(f"global_store_short v9, v{R3}, s[14:15]")
        if c24: a.label("L_skip2")
    else:
        for ctl in ["quad_perm:[1,0,3,2]", "quad_perm:[2,3,0,1]", "row_half_mirror"]:
            for k in range(4):
                a(f"v_add_f32_dpp v{R3+k}, v{R3+k}, v{R3+k} {ctl} row_mask:0xf bank_mask:0xf")
        a(f"v_cvt_pk_bf16_f32 v{R3}, v{R3}, v{R3+1}")
        a(f"v_cvt_pk_bf16_f32 v{R3+1}, v{R3+2}, v{R3+3}")
        a("s_mov_b32 exec_lo, 0x01010101"); a("s_mov_b32 exec_hi, 0x00000101")
        a(f"global_store_dwordx2 v9, v[{R3}:{R3+1}], s[14:15]")
    if epst < 2:
        a("s_cmp_lg_u32 s37, 0")
        a("s_cbranch_scc1 L_noep")
        a("s_mov_b64 exec, 1")
        a("global_store_dword v10, v11, s[20:21]" + (" sc1" if epst == 0 else ""))
        if dbgts:
            a("s_memrealtime s[88:89]")
            a("s_waitcnt lgkmcnt(0)")
            a("s_lshl_b32 s38, s36, 2")
            a("v_mov_b32 v2, s38"); a("v_mov_b32 v3, s86"); a("v_mov_b32 v4, s88")
            a("global_store_dword v2, v3, s[16:17]")
            a("global_store_dword v2, v4, s[16:17] offset:32")
        a.label("L_noep")
    if stamps:
        a("s_memrealtime s[76:77]")
        a("s_waitcnt lgkmcnt(0)")
        a("s_lshl_b32 s52, s2, 10")
        a(f"s_add_u32 s52, s52, {wsbase + WS_ST + 512}")
        a("s_mov_b64 exec, 1")
        a("v_mov_b32 v1, s52")
        for k, sr in enumerate([60, 62, 64, 66, 68, 70, 72, 74, 76, 78, 80, 82, 84]):
            a(f"v_mov_b32 v2, s{sr}"); a(f"v_mov_b32 v3, s{sr+1}")
            a(f"global_store_dwordx2 v1, v[2:3], s[18:19] offset:{8*k}")
            a("s_nop 1")
    a.label("L_end")
    a("s_endpgm")
    if adapt:
        if par:
            a.label("L_par_wt")
            a("global_store_dwordx4 v14, v[16:19], s[18:19] sc1")
            a("s_branch L_par_bk")
        for name, stores in ool:
            a.label(f"L_{name}_wt")
            stores('wt')
            a(f"s_branch L_{name}_bk")
        def rep():
            a("s_mov_b32 s54, 1")
            a("s_mov_b32 exec_lo, 0x00ff00ff"); a("s_mov_b32 exec_hi, 0x00ff00ff")
            a(f"global_store_dwordx4 v160, v[{VB}:{VB+3}], s[20:21] sc1")
            a(f"global_store_dwordx4 v161, v[{VB+4}:{VB+7}], s[20:21] sc1")
            a("s_mov_b64 exec, -1")
        a.label("L_rep_tmo")
        rep()
        a("s_branch L_rep_tmo_bk")
        a.label("L_rep_die")
        a("s_cmp_lg_u32 s54, 0")
        a("s_cbranch_scc1 L_rep_die_bk")
        rep()
        a("s_branch L_rep_die_bk")
    tail = []
    tail.append('.section .rodata,"a"')
    tail.append('.p2align 6')
    tail.append(f'.amdhsa_kernel {KNAME}')
    tail.append('  .amdhsa_next_free_vgpr 168')
    tail.append('  .amdhsa_next_free_sgpr 96')
    tail.append('  .amdhsa_accum_offset 168')
    tail.append('  .amdhsa_group_segment_fixed_size 0')
    tail.append('  .amdhsa_kernarg_size 64')
    tail.append('  .amdhsa_user_sgpr_count 2')
    tail.append('  .amdhsa_user_sgpr_kernarg_segment_ptr 1')
    tail.append('  .amdhsa_system_sgpr_workgroup_id_x 1')
    tail.append('  .amdhsa_float_denorm_mode_32 3')
    tail.append('.end_amdhsa_kernel')
    return "\n".join(hdr + a.L + tail) + "\n"


if __name__ == "__main__":
    for arg in sys.argv[1:]:
        name, _, kv = arg.partition(":")
        d = {}
        if kv:
            for p in kv.split(","):
                k, v = p.split("=")
                try:
                    d[k] = int(v, 0)
                except ValueError:
                    d[k] = v.replace("+", " ").replace("none", "")
        open(name + ".s", "w").write(gen(**d))
```
